```python
import torch

def _softmax(x, axis=-1):
    return torch.softmax(x, dim=axis)
def _gelu(x):
    return torch.nn.functional.gelu(x, approximate="tanh")
def _silu(x):
    return torch.nn.functional.silu(x)
def _sigmoid(x):
    return torch.sigmoid(x)
def _layernorm(x, axis=-1, eps=1e-5):
    m = x.mean(dim=axis, keepdim=True)
    v = x.var(dim=axis, keepdim=True, unbiased=False)
    return (x - m) / torch.sqrt(v + eps)
def _scatter_add(tgt, idx, src, axis=0):
    return tgt.clone().index_add_(axis, idx, src)
def _segment_sum(src, seg, n):
    out = torch.zeros((n,) + src.shape[1:], dtype=src.dtype)
    return out.index_add_(0, seg, src)
def _pad(x, pw):
    flat = tuple(v for pair in reversed(pw) for v in pair)
    return torch.nn.functional.pad(x, flat)

kernel_name = 'standalone__normalfloat_lut_codebook_lookup__prompt'

def setup_inputs():

    _w = (lambda a: (lambda t: t.to(torch.bfloat16) if t.is_floating_point() else t)(torch.as_tensor(a)))
    B, S, D, F = 1, 2048, 1024, 3584
    G = -1 if -1 > 0 else D
    D = (D // G) * G
    ng = D // G
    nf4 = torch.tensor([
        -1.0, -0.6961928009986877, -0.5250730514526367, -0.39491748809814453,
        -0.28444138169288635, -0.18477343022823334, -0.09105003625154495, 0.0,
        0.07958029955625534, 0.16093020141124725, 0.24611230194568634, 0.33791524171829224,
        0.44070982933044434, 0.5626170039176941, 0.7229568362236023, 1.0
    ], dtype=float)
    qw = torch.randint(0, 16, (D, F)).to(torch.int64)
    absmax = (torch.abs((lambda *s: torch.randn(*s, dtype=torch.bfloat16) * 0.05)(ng, F)) + 0.01).to(float)
    return {
        "x": _w((lambda *s: torch.randn(*s, dtype=torch.bfloat16) * 0.05)(B, S, D)),
        "qw": _w(qw),
        "codebook": _w(nf4),
        "absmax": _w(absmax),
    }

def reference(x, qw, codebook, absmax):
    B, S, D = x.shape
    ng, F = absmax.shape
    G = D // ng
    w_nf = codebook[qw]
    s = (lambda x, n, axis: torch.repeat_interleave(x, n, dim=axis))(absmax, G, axis=0)
    w = (lambda x, dt: x.to(dt))(w_nf * s, x.dtype)
    return torch.einsum("bsd,df->bsf", x, w)
```

```python
KN = "standalone__normalfloat_lut_codebook_lookup__prompt_kernel"
HDR = """; Kernarg layout for this problem (56 bytes, ptrs only, base s[0:1]):
"""
class Asm:
    def __init__(self):
        self.lines = []
    def __call__(self, s):
        for l in s.strip("\n").split("\n"):
            self.lines.append("    " + l.strip() if not l.strip().endswith(":") else l.strip())
    def label(self, name):
        self.lines.append(name + ":")
    def text(self):
        return "\n".join(self.lines) + "\n"

def kernel_text(name, body, vgpr, sgpr=102, accum=None):
    if accum is None:
        accum = min(256, (vgpr + 3) // 4 * 4)
    code = f""".globl {name}
.p2align 8
.type {name},@function
{name}:
{body}"""
    kd = f""".p2align 6
.amdhsa_kernel {name}
  .amdhsa_next_free_vgpr {vgpr}
  .amdhsa_next_free_sgpr {sgpr}
  .amdhsa_accum_offset {accum}
  .amdhsa_group_segment_fixed_size 0
  .amdhsa_kernarg_size 56
  .amdhsa_user_sgpr_count 2
  .amdhsa_user_sgpr_kernarg_segment_ptr 1
  .amdhsa_system_sgpr_workgroup_id_x 1
.end_amdhsa_kernel
"""
    return code, kd

def file_text(launch_lines, kernels):
    s = HDR
    for l in launch_lines:
        s += l + "\n"
    s += '.amdgcn_target "amdgcn-amd-amdhsa--gfx950"\n.text\n'
    for code, kd in kernels:
        s += code
    s += '.section .rodata,"a"\n'
    for code, kd in kernels:
        s += kd
    return s
```

```python
import sys
from asmlib import *

K1N = "nf4_pack_kernel"
K2N = KN
P_BYTES = 1024 * 3584 // 2

def gen_k1(store_flags="", stamp=False):
    a = Asm()
    a(f"""
    s_cmp_ge_u32 s2, 224
    s_cbranch_scc1 L1_end
    s_load_dwordx2 s[4:5], s[0:1], 8
    s_load_dwordx2 s[8:9], s[0:1], 48
    s_lshr_b32 s12, s2, 4
    s_and_b32 s13, s2, 15
    v_lshrrev_b32 v2, 6, v0
    v_and_b32 v1, 63, v0
    v_lshlrev_b32 v3, 4, v1
    v_readfirstlane_b32 s14, v2
    s_mov_b32 s6, {1024*3584*4}
    s_mov_b32 s7, 0x20000
    s_mov_b32 s10, {P_BYTES}
    s_mov_b32 s11, 0x20000
    """)
    a(f"""
    s_lshr_b32 s15, s14, 1
    s_and_b32 s16, s14, 1
    s_lshl_b32 s17, s13, 6
    s_lshl_b32 s18, s15, 5
    s_add_u32 s17, s17, s18
    s_lshl_b32 s18, s16, 3
    s_add_u32 s17, s17, s18
    s_mul_i32 s17, s17, 14336
    s_lshl_b32 s18, s12, 10
    s_add_u32 s17, s17, s18
    s_waitcnt lgkmcnt(0)
    """)
    for tt in range(2):
        for j in range(8):
            r = 16 + (tt * 8 + j) * 4
            off = (tt * 16 + j) * 14336
            if off:
                a(f"s_add_u32 s19, s17, {off}")
                a(f"buffer_load_dwordx4 v[{r}:{r+3}], v3, s[4:7], s19 offen")
            else:
                a(f"buffer_load_dwordx4 v[{r}:{r+3}], v3, s[4:7], s17 offen")
    a(f"""
    v_lshrrev_b32 v4, 4, v1
    v_lshlrev_b32 v4, 15, v4
    v_and_b32 v5, 15, v1
    v_lshlrev_b32 v5, 5, v5
    v_add_u32 v4, v4, v5
    s_lshl_b32 s20, s12, 17
    s_lshl_b32 s21, s13, 11
    s_add_u32 s20, s20, s21
    s_lshl_b32 s21, s15, 10
    s_add_u32 s20, s20, s21
    s_lshl_b32 s21, s16, 9
    s_add_u32 s20, s20, s21
    """)
    for tt in range(2):
        a(f"s_waitcnt vmcnt({8 if tt == 0 else 0})")
        for c in range(4):
            e, b = c >> 1, c & 1
            d = 8 + e * 4 + tt * 2 + b
            src = lambda j: 16 + (tt * 8 + j) * 4 + c
            a(f"v_lshl_or_b32 v{d}, v{src(1)}, 4, v{src(0)}")
            for j in range(2, 8):
                a(f"v_lshl_or_b32 v{d}, v{src(j)}, {4*j}, v{d}")
    a(f"""
    buffer_store_dwordx4 v[8:11], v4, s[8:11], s20 offen {store_flags}
    buffer_store_dwordx4 v[12:15], v4, s[8:11], s20 offen offset:16 {store_flags}
    """)
    a.label("L1_end")
    a("s_endpgm")
    return kernel_text(K1N, a.text(), 80, sgpr=32)

class Sched:
    def __init__(self, a):
        self.a = a
        self.q = []
    def ds(self, text, tag):
        self.a(text)
        self.q.append(tag)
    def need(self, tags, extra=""):
        idx = -1
        for i, t in enumerate(self.q):
            if t in tags: idx = i
        if idx < 0:
            if extra: self.a(f"s_waitcnt {extra}")
            return
        n = len(self.q) - 1 - idx
        assert n <= 15
        self.a(f"s_waitcnt {extra} lgkmcnt({n})".replace("  ", " "))
        self.q = self.q[idx+1:]
    def drain(self, extra=""):
        self.a(f"s_waitcnt {extra} lgkmcnt(0)".replace("  ", " "))
        self.q = []

def gen_k2(stamp=False, store_flags="sc0 sc1", do_mfma=True, do_lut=True, do_xread=True, do_loads=True):
    a = Asm()
    NB = 4
    XB = 65536
    V_LANE4, V_XOFF, V_XRD, V_POFF = 2, 4, 8, 12
    V_LA = 16; V_WF = 24; V_XF = 40; V_P = 72; V_SC = 104; V_ACC = 128
    acc = lambda mt, b: V_ACC + (mt * 2 + b) * 16
    a(f"""
    s_cmp_ge_u32 s2, 224
    s_cbranch_scc1 L2_end
    s_load_dwordx2 s[8:9], s[0:1], 0
    s_load_dwordx4 s[40:43], s[0:1], 16
    s_load_dwordx2 s[16:17], s[0:1], 32
    s_load_dwordx2 s[12:13], s[0:1], 48
    """)
    if stamp: a("s_memtime s[60:61]\ns_memrealtime s[70:71]")
    a(f"""
    v_and_b32 v1, 63, v0
    v_lshrrev_b32 v3, 6, v0
    s_and_b32 s44, s2, 7
    s_lshr_b32 s45, s2, 3
    v_readfirstlane_b32 s34, v3
    s_and_b32 s37, s44, 3
    s_lshl_b32 s37, s37, 2
    s_and_b32 s46, s45, 3
    s_add_u32 s37, s37, s46
    s_lshr_b32 s38, s44, 2
    s_mul_i32 s38, s38, 7
    s_lshr_b32 s46, s45, 2
    s_add_u32 s38, s38, s46
    s_mov_b32 s10, {2048*1024*2}
    s_mov_b32 s11, 0x20000
    s_mov_b32 s14, {P_BYTES}
    s_mov_b32 s15, 0x20000
    s_mov_b32 s18, {2048*3584*2}
    s_mov_b32 s19, 0x20000
    s_mov_b32 s22, 32
    s_mov_b32 s23, 0x20000
    s_mov_b32 s26, 7168
    s_mov_b32 s27, 0x20000
    s_mov_b32 s28, 0x0c0c0400
    s_mov_b32 s29, 0x0c0c0500
    s_mov_b32 s30, 0x0c0c0600
    s_mov_b32 s31, 0x0c0c0700
    """)
    a(f"""
    v_lshrrev_b32 v13, 3, v1
    v_lshl_add_u32 v13, v3, 5, v13
    v_and_b32 v14, 7, v1
    """)
    for i in range(4):
        a(f"""
        v_add_u32 v15, {8*i}, v13
        v_bfe_u32 v16, v15, 1, 3
        v_xor_b32 v16, v16, v14
        v_lshlrev_b32 v16, 4, v16
        v_lshl_add_u32 v16, v15, 11, v16
        v_subrev_u32 v{V_XOFF+i}, {i*1024}, v16
        """)
    a(f"""
    v_lshlrev_b32 v{V_POFF}, 4, v1
    s_lshl_b32 s32, s37, 18
    s_lshl_b32 s33, s38, 2
    s_add_u32 s33, s33, s34
    s_lshl_b32 s33, s33, 15
    s_lshl_b32 s35, s34, 12
    s_add_u32 s35, s35, {XB}
    v_and_b32 v16, 15, v0
    v_lshlrev_b32 v16, 1, v16
    v_lshrrev_b32 v17, 4, v0
    v_lshlrev_b32 v17, 1, v17
    v_lshrrev_b32 v18, 5, v1
    v_lshlrev_b32 v18, 4, v18
    v_lshl_add_u32 v18, v3, 7, v18
    s_lshl_b32 s47, s38, 9
    s_waitcnt lgkmcnt(0)
    s_mov_b32 s20, s40
    s_mov_b32 s21, s41
    s_mov_b32 s24, s42
    s_mov_b32 s25, s43
    buffer_load_ushort v20, v16, s[20:23], 0 offen
    buffer_load_ushort v21, v17, s[20:23], 0 offen
    """)
    def issue_loads(buf):
        out = []
        out.append(f"s_add_u32 m0, s35, {buf*16384}")
        out.append(f"buffer_load_dwordx4 v[{V_P+buf*8}:{V_P+buf*8+3}], v{V_POFF}, s[12:15], s33 offen")
        for i in range(4):
            out.append(f"buffer_load_dwordx4 v{V_XOFF+i}, s[8:11], s32 offen offset:{i*1024} lds")
        out.append(f"buffer_load_dwordx4 v[{V_P+buf*8+4}:{V_P+buf*8+7}], v{V_POFF}, s[12:15], s33 offen offset:1024")
        out.append("s_add_u32 s32, s32, 128")
        out.append("s_add_u32 s33, s33, 2048")
        return out
    for s in range(NB):
        for l in issue_loads(s): a(l)
        if s == 0:
            for u in range(4):
                a(f"buffer_load_dwordx4 v[{V_SC+4*u}:{V_SC+4*u+3}], v18, s[24:27], s47 offen offset:{32*u}")
    a(f"""
    v_and_b32 v13, 31, v1
    v_lshlrev_b32 v{V_LANE4}, 2, v13
    v_bfe_u32 v14, v13, 1, 3
    v_lshrrev_b32 v15, 5, v1
    v_xor_b32 v14, v14, v15
    v_lshlrev_b32 v14, 4, v14
    v_lshl_add_u32 v14, v13, 7, v14
    v_add_u32 v{V_XRD}, {XB}, v14
    v_xor_b32 v{V_XRD+1}, 32, v{V_XRD}
    v_xor_b32 v{V_XRD+2}, 64, v{V_XRD}
    v_xor_b32 v{V_XRD+3}, 96, v{V_XRD}
    """)
    for r in range(128): a(f"v_mov_b32 v{V_ACC+r}, 0")
    a(f"""
    v_and_b32 v22, 7, v0
    v_lshlrev_b32 v22, 4, v22
    v_lshl_add_u32 v22, v0, 8, v22
    s_waitcnt vmcnt({NB*6+4})
    v_lshl_or_b32 v24, v21, 16, v20
    v_mov_b32 v25, v24
    v_mov_b32 v26, v24
    v_mov_b32 v27, v24
    """)
    for j in range(8):
        if j:
            a(f"v_xor_b32 v23, {16*j}, v22")
            a(f"ds_write_b128 v23, v[24:27]")
        else:
            a(f"ds_write_b128 v22, v[24:27]")
    a(f"s_waitcnt vmcnt({(NB-1)*6+4}) lgkmcnt(0)")
    a("s_barrier")
    if stamp: a("s_memtime s[62:63]\ns_waitcnt lgkmcnt(0)")
    sc = Sched(a)
    def prefetch_ops(stage_buf, t, fset):
        ops = []
        preg = lambda b: V_P + stage_buf * 8 + (t >> 1) * 4 + (t & 1) * 2 + b
        def wops(b):
            o = []
            for j in range(4):
                la = V_LA + b * 4 + j
                o.append(("v", f"v_perm_b32 v{la}, v{preg(b)}, v{V_LANE4}, s{28+j}", None))
                o.append(("d", f"ds_read_b32 v{V_WF + fset*8 + b*4 + j}, v{la}", ("w", fset, b)))
            return o if do_lut else []
        def xop(mt):
            r = V_XF + fset * 16 + mt * 4
            return [("d", f"ds_read_b128 v[{r}:{r+3}], v{V_XRD+t} offset:{stage_buf*16384 + mt*4096}", ("x", fset, mt))] if do_xread else []
        w0, w1 = wops(0), wops(1)
        def pair(o):
            if not o: return []
            return [o[0], o[2], o[1], o[3], o[4], o[6], o[5], o[7]]
        ops = xop(0) + pair(w0) + pair(w1) + xop(1) + xop(2) + xop(3)
        return ops
    def emit(op):
        kind, text, tag = op
        if kind == "d": sc.ds(text, tag)
        else: a(text)
    for op in prefetch_ops(0, 0, 0): emit(op)
    a("s_mov_b32 s36, 0")
    a.label("L2_loop")
    q0 = list(sc.q)
    for s in range(NB):
        for t in range(4):
            fset = t & 1
            nset = fset ^ 1
            if t < 3: ops = prefetch_ops(s, t + 1, nset)
            else: ops = prefetch_ops((s + 1) % NB, 0, nset)
            loads = issue_loads(s) if (t == 3 and do_loads) else []
            gaps = [[] for _ in range(8)]
            if t < 3:
                per = [3, 3, 3, 3, 3, 3, 2, 0]
                i = 0
                for g in range(8):
                    gaps[g] = ops[i:i+per[g]]; i += per[g]
                gaps[6] += ops[i:]
            else:
                per = [0, 4, 4, 4, 4, 2, 2, 0]
                i = 0
                for g in range(8):
                    gaps[g] = ops[i:i+per[g]]; i += per[g]
                gaps[6] += ops[i:]
                if loads:
                    lo = [("s", l, None) for l in loads]
                    gaps[0] = gaps[0] + lo[0:2]
                    gaps[5] = gaps[5] + lo[2:3]
                    gaps[6] = gaps[6] + lo[3:4]
                    gaps[7] = gaps[7] + lo[4:]
            for m in range(8):
                mt, b = m >> 1, m & 1
                if t == 3 and m == 0:
                    sc.drain()
                else:
                    sc.need([("w", fset, b), ("x", fset, mt)])
                wr = V_WF + fset * 8 + b * 4
                xr = V_XF + fset * 16 + mt * 4
                c = acc(mt, b)
                if do_mfma:
                    a(f"v_mfma_f32_32x32x16_bf16 v[{c}:{c+15}], v[{wr}:{wr+3}], v[{xr}:{xr+3}], v[{c}:{c+15}]")
                if t == 3 and m == 0:
                    if s == 0:
                        a("s_cmp_eq_u32 s36, 3")
                        a("s_cselect_b32 s10, 0, s10")
                        a("s_cselect_b32 s14, 0, s14")
                    a(f"s_waitcnt vmcnt({(NB-2)*6})")
                    a("s_barrier")
                for op in gaps[m]: emit(op)
    assert sc.q == q0, (sc.q, q0)
    a("""
    s_add_u32 s36, s36, 1
    s_cmp_lt_u32 s36, 4
    s_cbranch_scc1 L2_loop
    """)
    if stamp: a("s_memtime s[64:65]")
    V_SLO, V_SHI = 24, 40
    V_T = 56
    V_R = 88
    a("s_waitcnt vmcnt(0) lgkmcnt(0)")
    for r in range(16):
        a(f"v_lshlrev_b32 v{V_SLO+r}, 16, v{V_SC+r}")
        a(f"v_and_b32 v{V_SHI+r}, 0xffff0000, v{V_SC+r}")
    a(f"""
    v_and_b32 v13, 31, v1
    v_lshrrev_b32 v14, 5, v1
    v_and_b32 v15, 7, v1
    v_xor_b32 v14, v14, v15
    v_lshlrev_b32 v14, 4, v14
    v_lshl_add_u32 v14, v13, 7, v14
    v_add_u32 v4, s35, v14
    v_xor_b32 v5, 32, v4
    v_xor_b32 v6, 64, v4
    v_xor_b32 v7, 96, v4
    v_lshrrev_b32 v13, 3, v1
    v_xor_b32 v14, v13, v15
    v_lshlrev_b32 v14, 4, v14
    v_lshl_add_u32 v14, v13, 7, v14
    v_add_u32 v8, s35, v14
    v_mul_u32_u24 v9, 7168, v13
    v_lshl_add_u32 v9, v15, 4, v9
    s_mul_i32 s48, s37, {128*7168}
    s_add_u32 s48, s48, s47
    s_lshl_b32 s49, s34, 7
    s_add_u32 s48, s48, s49
    """)
    def conv(mt):
        t = V_T + (mt & 1) * 16
        for b in range(2):
            sb = V_SLO if b == 0 else V_SHI
            for r in range(0, 16, 2):
                c = acc(mt, b) + r
                a(f"v_pk_mul_f32 v[{c}:{c+1}], v[{c}:{c+1}], v[{sb+r}:{sb+r+1}]")
        for u in range(4):
            for q in range(4):
                r = 4 * u + q
                a(f"v_cvt_pk_bf16_f32 v{t+r}, v{acc(mt,0)+r}, v{acc(mt,1)+r}")
            a(f"ds_write_b128 v{4+u}, v[{t+4*u}:{t+4*u+3}] offset:{mt*16384}")
    def rd(mt, base):
        for i in range(4):
            a(f"ds_read_b128 v[{base+4*i}:{base+4*i+3}], v8 offset:{mt*16384 + i*1024}")
    def st(mt, base):
        for i in range(4):
            a(f"s_waitcnt lgkmcnt({3-i})")
            a(f"buffer_store_dwordx4 v[{base+4*i}:{base+4*i+3}], v9, s[16:19], s48 offen {store_flags}")
            a(f"s_add_u32 s48, s48, {8*7168}")
    for mt in range(4):
        conv(mt)
        rd(mt, acc(mt, 0))
        st(mt, acc(mt, 0))
    if stamp:
        a(f"""
        s_waitcnt vmcnt(0)
        s_memtime s[66:67]
        s_memrealtime s[72:73]
        s_waitcnt lgkmcnt(0)
        s_sub_u32 s62, s62, s60
        s_sub_u32 s64, s64, s60
        s_sub_u32 s66, s66, s60
        v_mov_b32 v20, s62
        v_mov_b32 v21, s64
        v_mov_b32 v22, s66
        v_mov_b32 v23, s70
        v_mov_b32 v24, s72
        v_mov_b32 v25, s2
        v_mov_b32 v26, s34
        v_mov_b32 v27, 0
        s_mov_b32 s14, 0x10000000
        s_lshl_b32 s3, s2, 2
        s_add_u32 s3, s3, s34
        s_lshl_b32 s3, s3, 5
        s_add_u32 s3, s3, 0x800000
        v_mov_b32 v28, 0
        v_cmp_eq_u32 vcc, 0, v1
        s_and_saveexec_b64 s[50:51], vcc
        buffer_store_dwordx4 v[20:23], v28, s[12:15], s3 offen
        buffer_store_dwordx4 v[24:27], v28, s[12:15], s3 offen offset:16
        """)
    a.label("L2_end")
    a("s_endpgm")
    return kernel_text(K2N, a.text(), 256, sgpr=80)

def gen(**kw):
    k1kw = {k[3:]: v for k, v in kw.items() if k.startswith("k1_")}
    k2kw = {k: v for k, v in kw.items() if not k.startswith("k1_")}
    return file_text([f"; @launch kernel={K1N} grid=(224,1,1) block=(256,1,1) lds=0",
                      f"; @launch kernel={K2N} grid=(224,1,1) block=(256,1,1) lds=131072"],
                     [gen_k1(**k1kw), gen_k2(**k2kw)])

if __name__ == "__main__":
    from build import build
    open("q1.s", "w").write(gen())
    build("q1.s", "q1.co")
    open("q1s.s", "w").write(gen(stamp=True))
    build("q1s.s", "q1s.co")
    print("ok")
```

```python
from gen_q import *
from build import build
def empty():
    return kernel_text("nop_kernel", "    s_endpgm\n", 8, sgpr=8)
l1 = f"; @launch kernel={K1N} grid=(224,1,1) block=(256,1,1) lds=0"
l2 = f"; @launch kernel={K2N} grid=(224,1,1) block=(256,1,1) lds=131072"
l0 = "; @launch kernel=nop_kernel grid=(224,1,1) block=(256,1,1) lds=0"
ks = [gen_k1(), gen_k2(), empty()]
open("cal_a.s", "w").write(file_text([l1, l2], ks[:2]))
open("cal_b.s", "w").write(file_text([l1, l2, l0], ks))
open("cal_c.s", "w").write(file_text([l0, l1, l2], ks))
open("cal_d.s", "w").write(file_text([l1, l2, l2], ks[:2]))
open("cal_e.s", "w").write(file_text([l1, l1, l2], ks[:2]))
for n in "abcde": build(f"cal_{n}.s", f"cal_{n}.co")
```
